```python
import torch

def _softmax(x, axis=-1):
    return torch.softmax(x, dim=axis)
def _gelu(x):
    return torch.nn.functional.gelu(x, approximate="tanh")
def _silu(x):
    return torch.nn.functional.silu(x)
def _sigmoid(x):
    return torch.sigmoid(x)
def _layernorm(x, axis=-1, eps=1e-5):
    m = x.mean(dim=axis, keepdim=True)
    v = x.var(dim=axis, keepdim=True, unbiased=False)
    return (x - m) / torch.sqrt(v + eps)
def _scatter_add(tgt, idx, src, axis=0):
    return tgt.clone().index_add_(axis, idx, src)
def _segment_sum(src, seg, n):
    out = torch.zeros((n,) + src.shape[1:], dtype=src.dtype)
    return out.index_add_(0, seg, src)
def _pad(x, pw):
    flat = tuple(v for pair in reversed(pw) for v in pair)
    return torch.nn.functional.pad(x, flat)

kernel_name = 'standalone__gqa_block_cached__near_ridge'

def setup_inputs():

    _w = (lambda a: (lambda t: t.to(torch.bfloat16) if t.is_floating_point() else t)(torch.as_tensor(a)))
    B, Sq, D = 8, 128, 576
    Hq, Hkv, Sk, Dh = 32, 16, 512, 128
    assert Hq % Hkv == 0, (Hq, Hkv)
    return {
        "x": _w((lambda *s: torch.randn(*s, dtype=torch.bfloat16) * 0.8)(B, Sq, D)),
        "k_cache": _w((lambda *s: torch.randn(*s, dtype=torch.bfloat16) * 0.8)(B, Hkv, Sk, Dh)),
        "v_cache": _w((lambda *s: torch.randn(*s, dtype=torch.bfloat16) * 0.05)(B, Hkv, Sk, Dh)),
        "wq": _w((lambda *s: torch.randn(*s, dtype=torch.bfloat16) * 0.8)(D, Hq * Dh) * (D ** -0.5)),
        "wo": _w((lambda *s: torch.randn(*s, dtype=torch.bfloat16) * 0.05)(Hq * Dh, D) * ((Hq * Dh) ** -0.5)),
    }

def reference(x, k_cache, v_cache, wq, wo):
    B, Sq, D = x.shape
    Hq, Dh = 32, 128
    Hkv = k_cache.shape[1]
    rep = Hq // Hkv
    q = (lambda x, *d: x.permute(*d))((x @ wq).reshape(B, Sq, Hq, Dh), 0, 2, 1, 3)
    k = (lambda x, n, axis: torch.repeat_interleave(x, n, dim=axis))(k_cache, rep, axis=1)
    v = (lambda x, n, axis: torch.repeat_interleave(x, n, dim=axis))(v_cache, rep, axis=1)
    scores = torch.einsum("bhqd,bhkd->bhqk", q, k) * (Dh ** -0.5)
    p = _softmax(scores, axis=-1)
    o = torch.einsum("bhqk,bhkd->bhqd", p, v)
    return (lambda x, *d: x.permute(*d))(o, 0, 2, 1, 3).reshape(B, Sq, Hq * Dh) @ wo
```

```python
class I:
    __slots__ = ("t", "k", "r", "w", "c", "passes", "unit", "cost", "tag")
    def __init__(s, t, k, r=(), w=(), c=(), passes=0, unit=None, cost=1, tag=None):
        s.t, s.k, s.r, s.w, s.c, s.passes, s.unit, s.cost, s.tag = t, k, set(r), set(w), set(c), passes, unit, cost, tag

def R(a, n=1): return range(a, a + n)
def vr(a, n=1): return f"v{a}" if n == 1 else f"v[{a}:{a+n-1}]"

def mfma32(d, a, b, c=None):
    cs = "0" if c is None else vr(c, 16)
    return I(f"v_mfma_f32_32x32x16_bf16 {vr(d,16)}, {vr(a,4)}, {vr(b,4)}, {cs}", "mfma",
             r=list(R(a,4))+list(R(b,4)), w=R(d,16), c=() if c is None else R(c,16), passes=8)
def mfma16(d, a, b, c=None):
    cs = "0" if c is None else vr(c, 4)
    return I(f"v_mfma_f32_16x16x32_bf16 {vr(d,4)}, {vr(a,4)}, {vr(b,4)}, {cs}", "mfma",
             r=list(R(a,4))+list(R(b,4)), w=R(d,4), c=() if c is None else R(c,4), passes=4)
def valu(op, d, *src, k="valu"):
    r = [x for x in src if isinstance(x, int)]
    txt = ", ".join(f"v{x}" if isinstance(x, int) else str(x) for x in src)
    return I(f"{op} v{d}, {txt}", k, r=r, w=[d], cost=2 if k == "trans" else 1)
def vexp(d, a): return valu("v_exp_f32", d, a, k="trans")
def vrcp(d, a): return valu("v_rcp_f32", d, a, k="trans")
def pkmul(d, a, b, bcast=True):
    m = " op_sel_hi:[1,0]" if bcast else ""
    return I(f"v_pk_mul_f32 {vr(d,2)}, {vr(a,2)}, {vr(b,2)}{m}", "valu", r=list(R(a,2))+list(R(b,2)), w=R(d,2))
def swap16(a, b): return I(f"v_permlane16_swap_b32 v{a}, v{b}", "perm", r=[a,b], w=[a,b])
def swap32(a, b): return I(f"v_permlane32_swap_b32 v{a}, v{b}", "perm", r=[a,b], w=[a,b])
def rd128(d, a, off, unit=None):
    assert 0 <= off < 65536
    return I(f"ds_read_b128 {vr(d,4)}, v{a} offset:{off}", "ldsr", r=[a], w=R(d,4), unit=unit)
def rdtr(d, a, off, unit=None):
    assert 0 <= off < 65536
    return I(f"ds_read_b64_tr_b16 {vr(d,2)}, v{a} offset:{off}", "ldsr", r=[a], w=R(d,2), unit=unit)
def wr128(a, s, off):
    return I(f"ds_write_b128 v{a}, {vr(s,4)} offset:{off}", "ldsw", r=[a]+list(R(s,4)), cost=2)
def store4(s, a, srd, soff, mod="", off=0):
    o = f" offset:{off}" if off else ""
    return I(f"buffer_store_dwordx4 {vr(s,4)}, v{a}, s[{srd}:{srd+3}], {soff} offen{o} {mod}".rstrip(), "vst", r=[a]+list(R(s,4)), cost=3)
def salu(t): return I(t, "salu")
def barrier(tag=None): return I("s_barrier", "bar", tag=tag)
def label(t): return I(t + ":", "label", cost=0)
def raw(t, k="salu", r=(), w=()): return I(t, k, r=r, w=w)

def insert_waits(code, hoist=True):
    out = []
    lds = []
    done = 0
    pend = {}
    pendr = {}
    last_mfma_pos = None
    n_at_last = 0
    for ins in code:
        need = -1
        if ins.k == "bar":
            for q in range(len(lds) - 1, done - 1, -1):
                if lds[q].k == "ldsw": need = q; break
        for g in (ins.r | ins.w | ins.c):
            if g in pend and pend[g] >= done:
                need = max(need, pend[g])
        if need >= done:
            if hoist and ins.k == "mfma" and last_mfma_pos is not None and need < n_at_last:
                n = min(n_at_last - 1 - need, 15)
                w = I(f"s_waitcnt lgkmcnt({n})", "wait"); w.tag = n_at_last - n
                if last_mfma_pos < len(out) and out[last_mfma_pos].k == "wait":
                    out[last_mfma_pos] = w
                else:
                    out.insert(last_mfma_pos, w)
                done = n_at_last - n
            else:
                n = min(len(lds) - 1 - need, 15)
                w = I(f"s_waitcnt lgkmcnt({n})", "wait"); w.tag = len(lds) - n
                out.append(w)
                done = len(lds) - n
        out.append(ins)
        if ins.k in ("ldsr", "ldsw"):
            if ins.k == "ldsr":
                for g in ins.w: pend[g] = len(lds)
            lds.append(ins)
        if ins.k == "mfma":
            last_mfma_pos = len(out); n_at_last = len(lds)
    return out

def nop_states(ins):
    if ins.k == "label": return 0
    if ins.k == "nop": return ins.cost
    return 1

def fix_hazards(code, verbose=False):
    out = []
    added = 0
    def need_for(p, c):
        n = 0
        isv = lambda x: x.k in ("valu", "trans", "perm")
        if isv(p):
            if c.k == "mfma" and p.w & (c.r | c.c): n = max(n, 2)
            if c.k == "perm" and p.w & c.r: n = max(n, 2)
            if p.k == "trans" and c.k in ("valu", "perm") and p.w & c.r: n = max(n, 1)
            if c.k == "rfl" and p.w & c.r: n = max(n, 1)
        if p.k == "mfma":
            big = p.passes == 8
            if c.k == "mfma":
                if p.w & c.r: n = max(n, 12 if big else 8)
                if p.w & c.c and not (p.w == c.c and p.passes == c.passes): n = max(n, 10 if big else 6)
                if p.w & c.w and not (p.w == c.c and p.passes == c.passes): n = max(n, 10 if big else 6)
            elif c.k in ("valu", "trans", "perm", "ldsr", "ldsw", "vst", "rfl", "vld"):
                if p.w & (c.r | c.w): n = max(n, 12 if big else 8)
                if isv(c) and p.c & c.w: n = max(n, 7 if big else 3)
        if p.k == "vst" and p.r & c.w: n = max(n, 2)
        return n
    for ins in code:
        dist = 0
        pad = 0
        for p in reversed(out):
            if dist >= 12: break
            n = need_for(p, ins)
            if n > dist: pad = max(pad, n - dist)
            dist += nop_states(p)
        if pad:
            out.append(I(f"s_nop {pad-1}", "nop", cost=pad)); added += pad
            if verbose: print("pad", pad, "before", ins.t)
        out.append(ins)
    return out, added

def est_cycles(code):
    t = 0; pipe = 0; vfree = 0
    for ins in code:
        if ins.k == "label": continue
        if ins.k == "mfma":
            t = max(t, pipe, vfree); pipe = t + ins.passes * 4; vfree = t + 8; t += 4
        elif ins.k in ("salu", "wait", "bar"): t += 4
        elif ins.k == "nop": t += 4 * ins.cost
        else:
            t = max(t, vfree) + 4 * ins.cost
    return max(t, pipe)
```

```python
import sys, struct, math
from asmlib import *
from sched import schedule

def f2u(x): return struct.unpack("<I", struct.pack("<f", x))[0]
DEF = dict(ldslat=192, la_q=5, att_rate=4, o_rate=4, barq=10, bara=6, baro=10, kvmod="", wmod="", stmod="sc1", k2ld="",
           prof=0, dump="", ochain=1, prio=0, force_redo=0)

V_L, V_ST, V_XW, V_XR, V_FL, V_T0, V_T1 = 1, 2, 3, 4, 5, 6, 7
V_KA, V_VA, V_OA, V_NEGM = 8, 20, 26, 38
V_ACC, V_Q, V_S, V_CI, V_P, V_RING, NRING = 40, 104, 136, 168, 184, 200, 14
V_QA = 136
S_X, S_K, S_V, S_WQ, S_WO, S_WS = 24, 28, 32, 36, 40, 44
S_W, S_SCALE, S_SOFF, S_MASK, S_NOREDO, S_LW = 20, 21, 22, 23, 48, 50
SLOT0, NSLOT, USZ = 15, 20, 8192

def units():
    U = []
    for s in range(9):
        U.append(("x", s, 0))
        for cq in range(4): U.append(("wq", s, cq))
    U.append(("k", 0, 0))
    for j in range(15): U += [("k", j + 1, 0), ("v", j, 0)]
    U.append(("v", 15, 0))
    for w in range(4): U.append(("ex", w, 0))
    for s in range(9):
        for u in range(4): U.append(("wo", s, u))
    return U
UN = units(); UI = {u: i for i, u in enumerate(UN)}
def slot(u): return (SLOT0 + UI[u]) % NSLOT
def pu(u): return "U%d" % UI[u]

class Ring:
    def __init__(s): s.i = 0
    def get(s):
        r = V_RING + 4 * (s.i % NRING); s.i += 1; return r

def compute_prog(o):
    P = []; ring = Ring()
    a = P.append
    bars = []
    marks = {}
    nm = [0]
    def M(i): a(i); nm[0] += 1
    def rdu(ins, *us):
        ins.unit = [UI[u] for u in us]
        for u in us: ins.r.add(pu(u))
        return ins
    def needbar(name, us, ahead): bars.append((name, us, max(0, nm[0] - ahead)))
    for i in range(16): a(valu("v_mov_b32", V_CI + i, V_NEGM))
    a(valu("v_mov_b32", V_L, "0"))
    for s in range(9):
        needbar("Q%d" % s, [("x", s, 0)] + [("wq", s, c) for c in range(4)], o["barq"])
        ab = V_QA + 6 * (slot(("x", s, 0)) // 5)
        xs = V_P if s % 2 == 0 else V_Q
        for ks in range(2):
            for qb in range(2):
                a(rdu(rd128(xs + 4 * (2 * qb + ks), ab + ks, qb * 2048), ("x", s, 0)))
        for db in range(8):
            fr = []
            for ks in range(2):
                r = ring.get(); fr.append(r)
                for u in range(2):
                    a(rdu(rdtr(r + 2 * u, ab + 2 + (db & 3), USZ * (1 + (db >> 2)) + ks * 4096 + u * 512),
                          ("wq", s, db >> 2), ("wq", s, 2 + (db >> 2))))
            for qb in range(2):
                acc = V_ACC + 4 * (2 * db + qb)
                for ks in range(2):
                    M(mfma16(acc, fr[ks], xs + 4 * (2 * qb + ks), None if (s == 0 and ks == 0) else acc))
            if s == 8:
                q = V_Q + 4 * db
                for qb in range(2):
                    acc = V_ACC + 4 * (2 * db + qb)
                    for r in range(4): a(valu("v_mul_f32", acc + r, f"s{S_SCALE}", acc + r))
                    for e in range(2): a(valu("v_cvt_pk_bf16_f32", q + 2 * qb + e, acc + 2 * e, acc + 2 * e + 1))
                a(swap16(q, q + 2)); a(swap16(q + 1, q + 3))
    if o["dump"] == "q": return P, bars
    def win(u):
        b = slot(u) * USZ; return b >> 16, b & 0xffff
    def qk(j):
        S = V_S + 16 * (j & 1); u = ("k", j, 0); wn, off = win(u)
        for s in range(8):
            r = ring.get()
            a(rdu(rd128(r, V_KA + 4 * wn + (s & 3), off + (s >> 2) * 4096), u))
            M(mfma32(S, r, V_Q + 4 * s, V_CI if s == 0 else S))
    def sm(j):
        S = V_S + 16 * (j & 1); Pj = V_P + 8 * (j & 1)
        for e in range(8):
            for h in range(2):
                a(vexp(S + 2 * e + h, S + 2 * e + h))
            a(valu("v_cvt_pk_bf16_f32", Pj + e, S + 2 * e, S + 2 * e + 1))
            for h in range(2):
                a(valu("v_add_f32", V_L, V_L, S + 2 * e + h))
    def pv(j, after=None):
        Pj = V_P + 8 * (j & 1); u = ("v", j, 0); wn, off = win(u)
        for t in range(2):
            for db in range(4):
                r = ring.get()
                for uu in range(2):
                    a(rdu(rdtr(r + 2 * uu, V_VA + 2 * wn + (db & 1), off + (db >> 1) * 4096 + (16 * t + 8 * uu) * 128), u))
                O = V_ACC + 16 * db
                M(mfma32(O, r, Pj + 4 * t, None if (j == 0 and t == 0) else O))
                if after and t == 1: after(db)
    needbar("K0", [("k", 0, 0)], o["barq"])
    qk(0); sm(0)
    for j in range(15):
        needbar("A%d" % j, [("k", j + 1, 0), ("v", j, 0)], o["bara"])
        qk(j + 1); sm(j + 1)
        pv(j)
    needbar("A15", [("v", 15, 0)] + [("ex", w, 0) for w in range(4)] + [("wo", 0, u) for u in range(4)], o["bara"])
    a(valu("v_mov_b32", V_T0, V_L)); a(swap32(V_T0, V_L)); a(valu("v_add_f32", V_L, V_L, V_T0))
    a(vrcp(V_T1, V_L))
    lo, hi = f2u(2.0 ** -24), f2u(2.0 ** 24)
    if o["force_redo"]: lo, hi = f2u(2.0 ** 30), f2u(2.0 ** 31)
    a(valu("v_subrev_u32", V_T0, hex(lo), V_L))
    a(I(f"v_cmp_le_u32 vcc, {hex(hi - lo)}, v{V_T0}", "valu", r=[V_T0], w=["vcc"]))
    a(I(f"s_and_b64 vcc, vcc, s[{S_NOREDO}:{S_NOREDO+1}]\n\ts_cselect_b32 s{S_MASK}, -1, 0", "salu", r=["vcc"], w=["vcc", "mask"], cost=2))
    BO, BX = V_S, V_CI
    def norm(db):
        O = V_ACC + 16 * db; B = BO + 8 * db
        for i, d in ((0, 0), (1, 4), (2, 2), (3, 6)):
            for r in range(4): a(valu("v_mul_f32", O + 4 * i + r, O + 4 * i + r, V_T1))
            for e in range(2): a(valu("v_cvt_pk_bf16_f32", B + d + e, O + 4 * i + 2 * e, O + 4 * i + 2 * e + 1))
            if i & 1:
                for e in range(2): a(swap16(B + d - 4 + e, B + d + e))
        if db == 0:
            x = valu("v_or_b32", B, f"s{S_MASK}", B); x.r.add("mask"); a(x)
        for qb in range(2):
            x = wr128(V_XW, B + 4 * qb, (2 * db + qb) * 1024); x.r.add(pu(("ex", 0, 0))); x.w.add("X%d" % (2 * db + qb)); a(x)
    pv(15, norm)
    if o["dump"] == "o": return P, bars
    exu = [("ex", w, 0) for w in range(4)]
    for s in range(9):
        if s: needbar("O%d" % s, [("wo", s, u) for u in range(4)], o["baro"])
        b = slot(("wo", s, 0)) * USZ; wn, off = b >> 16, b & 0xffff
        acc0 = V_ACC + 16 * (s & 1); stg = V_ACC + 32 + 8 * (s & 1)
        def ld(own, db, nb):
            r = ring.get()
            for u in range(2):
                a(rdu(rdtr(r + 2 * u, V_OA + 4 * wn + 2 * (1 - own) + nb, off + (db >> 1) * USZ + (db & 1) * 4096 + u * 2048),
                      ("wo", s, db >> 1), ("wo", s, 2 + (db >> 1))))
            return r
        def mm(own, db, nb, qb, r):
            acc = acc0 + 4 * (2 * qb + nb)
            M(mfma16(acc, r, (BO if own else BX) + 8 * db + 4 * qb, None if (own and db == 0) else acc))
        for own in (1, 0):
            if s == 0 and own == 0:
                x = barrier("EX"); x.r |= set("X%d" % f for f in range(8)); x.w.add("EXD"); a(x)
                for f in range(8):
                    x = rd128(BX + 4 * f, V_XR, f * 1024); x.r.add("EXD"); x.unit = [UI[u] for u in exu]; a(x)
                x = I(f"ds_read_b32 v{V_T0}, v{V_FL}", "ldsr", r=[V_FL, "EXD"], w=[V_T0], unit=[UI[u] for u in exu]); a(x)
                a(I(f"v_cmp_eq_u32 vcc, -1, v{V_T0}", "valu", r=[V_T0], w=["vcc"]))
            if o["ochain"] == 1 or s == 0:
                for db in range(4):
                    for nb in range(2):
                        r = ld(own, db, nb)
                        for qb in range(2): mm(own, db, nb, qb, r)
                    if s == 0 and own == 0 and db == 0:
                        a(I(f"s_and_b64 vcc, vcc, s[{S_NOREDO}:{S_NOREDO+1}]\n\ts_cbranch_scc1 L_redo_c", "pin", r=["vcc"], w=["vcc"], cost=2))
            else:
                for nb in range(2):
                    rs = [ld(own, db, nb) for db in range(4)]
                    for qb in range(2):
                        for db in range(4): mm(own, db, nb, qb, rs[db])
        a(I(f"s_mov_b32 s{S_SOFF}, {s * 8192}", "salu", w=["soff"]))
        for qb in range(2):
            for nb in range(2):
                acc = acc0 + 4 * (2 * qb + nb)
                for e in range(2): a(valu("v_cvt_pk_bf16_f32", stg + 4 * qb + 2 * nb + e, acc + 2 * e, acc + 2 * e + 1))
            x = store4(stg + 4 * qb, V_ST, S_WS, f"s{S_SOFF}", o["stmod"], qb * 1024); x.r.add("soff"); a(x)
    return P, bars

def place_barriers(P, bars):
    out = []; n = 0; bi = 0
    def flush():
        nonlocal bi
        while bi < len(bars) and bars[bi][2] <= n:
            x = barrier(bars[bi][0]); x.w |= set(pu(u) for u in bars[bi][1]); x.unit = [UI[u] for u in bars[bi][1]]
            out.append(x); bi += 1
    flush()
    for ins in P:
        if ins.k == "bar" or ins.k == "pin":
            out.append(ins); continue
        out.append(ins)
        if ins.k == "mfma":
            n += 1; flush()
    assert bi == len(bars)
    return out

def analyse(code):
    bl = []; need = {}; lastrd = {}; n = 0; done = 0; donebar = []
    for ins in code:
        if ins.k == "wait": done = max(done, ins.tag)
        if ins.k in ("ldsr", "ldsw"):
            if ins.k == "ldsr":
                for u in ins.unit: lastrd[u] = n
            n += 1
        if ins.k == "bar":
            for u in (ins.unit or []): need[u] = len(bl)
            bl.append(ins.tag); donebar.append(done)
    free = {}
    for u, q in lastrd.items():
        f = [b for b in range(len(bl)) if donebar[b] > q]
        free[u] = f[0] if f else None
    return bl, need, free

def loader(o, bl, need, free):
    L = []; e = L.append
    nb = len(bl)
    todo = [u for u in range(len(UN)) if u in need]
    issued = []
    def emit(u):
        k, p, q = UN[u]
        if k == "ex": return
        for h in range(2):
            if k == "x": srd, va, so, md = S_X, 2, p * 128 + h * 36864, o["wmod"]
            if k == "wq": srd, va, so, md = S_WQ, 3, (64 * p + 32 * h) * 8192 + q * 128, o["wmod"]
            if k == "wo": srd, va, so, md = S_WO, 4, (64 * q + 32 * h) * 1152 + p * 128, o["wmod"]
            if k == "k": srd, va, so, md = S_K, 5, p * 8192 + h * 128, o["kvmod"]
            if k == "v": srd, va, so, md = S_V, 6, p * 8192 + h * 128, o["kvmod"]
            e(f"s_add_u32 m0, s{S_LW}, {slot(UN[u]) * USZ + h * 4096}")
            e(f"s_mov_b32 s{S_SOFF}, {so}")
            e(f"buffer_load_dwordx4 v{va}, s[{srd}:{srd+3}], s{S_SOFF} offen {md} lds".replace("  ", " "))
        issued.append(u)
    nxt = 0
    plan = []
    for b in range(nb):
        must = max([u for u in todo if need[u] <= b], default=-1)
        name = bl[b]
        rate = 99 if name[0] in "QK" else (o["att_rate"] if name[0] == "A" else o["o_rate"])
        cnt = 0
        while nxt < len(todo):
            u = todo[nxt]
            ok = u < NSLOT or (free.get(u - NSLOT) is not None and free[u - NSLOT] <= b - 1)
            if UN[u][0] == "ex":
                assert free[u - NSLOT] <= need[u]
                nxt += 1; continue
            if u <= must: assert ok, ("ring too small", UN[u], name)
            elif not ok or cnt >= rate or (name[0] in "QK" and u > must + o["la_q"]): break
            emit(u); nxt += 1; cnt += 1
        land = [i for i, u in enumerate(issued) if need[u] <= b]
        w = 2 * (len(issued) - 1 - max(land)) if land else None
        plan.append((name, cnt, w))
        if w is not None and any(need[u] == b for u in issued): e(f"s_waitcnt vmcnt({min(w, 63)})")
        e("s_barrier")
        if name == "EX":
            e(f"ds_read_b32 v8, v7\ns_waitcnt lgkmcnt(0)\nv_cmp_eq_u32 vcc, -1, v8\ns_nop 1")
            e(f"s_and_b64 vcc, vcc, s[{S_NOREDO}:{S_NOREDO+1}]\ns_cbranch_scc1 L_redo_l")
    assert nxt == len(todo)
    return L, plan

KD = '''.section .rodata,"a"
.p2align 6
.amdhsa_kernel {n}
  .amdhsa_next_free_vgpr {v}
  .amdhsa_next_free_sgpr 102
  .amdhsa_accum_offset {v}
  .amdhsa_group_segment_fixed_size 0
  .amdhsa_kernarg_size 64
  .amdhsa_user_sgpr_count 2
  .amdhsa_user_sgpr_kernarg_segment_ptr 1
  .amdhsa_system_sgpr_workgroup_id_x 1
.end_amdhsa_kernel
.text'''
K1, K2 = "standalone__gqa_block_cached__near_ridge_kernel", "gqa_reduce_kernel"

def srd(e, d, p, off, size):
    if off is None:
        e(f"s_mov_b32 s{d}, s{p}\ns_mov_b32 s{d+1}, s{p+1}\ns_mov_b32 s{d+2}, {size}\ns_mov_b32 s{d+3}, 0x20000")
    else:
        e(f"s_add_u32 s{d}, s{p}, s{off}\ns_addc_u32 s{d+1}, s{p+1}, 0\ns_sub_u32 s{d+2}, {size}, s{off}\ns_mov_b32 s{d+3}, 0x20000")

def gen(**kw):
    o = dict(DEF); o.update(kw)
    P, bars = compute_prog(o)
    P = place_barriers(P, bars)
    code, times = schedule(P, o["ldslat"], o.get("verbose"))
    code = insert_waits(code)
    code, pad = fix_hazards(code, o.get("verbose", 0) > 1)
    bl, need, free = analyse(code)
    LD, plan = loader(o, bl, need, free)
    if o.get("verbose"):
        print("est cycles", est_cycles(code), "nop pad", pad, "instrs", len(code)); print(plan)
    L = []; e = L.append
    e(f"; @launch kernel={K1} grid=(256,1,1) block=(512,1,1) lds=163840")
    e(f"; @launch kernel={K2} grid=(144,1,1) block=(512,1,1) lds=0")
    e('.amdgcn_target "amdgcn-amd-amdhsa--gfx950"\n.text')
    e(f".globl {K1}\n.p2align 8\n.type {K1},@function\n{K1}:")
    e("s_cmp_ge_u32 s2, 256\ns_cbranch_scc1 L_end1")
    e("s_load_dwordx8 s[4:11], s[0:1], 0\ns_load_dwordx8 s[12:19], s[0:1], 32")
    if o["prof"]: e("s_memtime s[60:61]\ns_memrealtime s[90:91]")
    e(f"v_lshrrev_b32 v1, 6, v0\nv_and_b32 v0, 63, v0\nv_readfirstlane_b32 s{S_W}, v1")
    e("s_and_b32 s51, s2, 7\ns_lshr_b32 s54, s2, 3\ns_and_b32 s52, s54, 1\ns_lshl1_add_u32 s52, s51, s52")
    e("s_lshr_b32 s53, s54, 1\ns_lshr_b32 s54, s54, 2")
    e("s_mul_i32 s55, s53, 73728\ns_lshl_b32 s56, s52, 9\ns_mul_i32 s57, s52, 294912")
    e("s_lshl4_add_u32 s58, s54, s52\ns_lshl_b32 s58, s58, 17")
    e("s_mul_i32 s59, s52, 1179648\ns_add_u32 s59, s59, s55")
    e(f"s_mov_b64 s[{S_NOREDO}:{S_NOREDO+1}], -1\nv_mov_b32 v{V_NEGM}, 0")
    e("s_waitcnt lgkmcnt(0)")
    srd(e, S_X, 4, 55, 1179648); srd(e, S_WQ, 10, 56, 4718592); srd(e, S_K, 6, 58, 16777216)
    e(f"s_cmp_lt_u32 s{S_W}, 4\ns_cbranch_scc1 L_compute")
    srd(e, S_V, 8, 58, 16777216); srd(e, S_WO, 12, 57, 4718592)
    e(f"s_sub_u32 s51, s{S_W}, 4\ns_lshl_b32 s{S_LW}, s51, 10\ns_lshl_b32 s51, s51, 3")
    e("v_lshrrev_b32 v8, 3, v0\nv_add_u32 v8, s51, v8\nv_and_b32 v9, 7, v0")
    e("v_bfe_u32 v10, v8, 1, 3\nv_xor_b32 v10, v10, v9\nv_lshlrev_b32 v10, 4, v10")
    e("v_mul_u32_u24 v11, 1152, v8\nv_add_u32 v2, v11, v10")
    e("v_bfe_u32 v12, v8, 3, 1\nv_and_b32 v13, 2, v8\nv_lshl_or_b32 v12, v12, 2, v13\nv_xor_b32 v12, v12, v9\nv_lshlrev_b32 v12, 4, v12")
    e("v_lshl_add_u32 v3, v8, 13, v12\nv_add_u32 v4, v11, v12\nv_lshl_add_u32 v5, v8, 8, v10")
    e("v_lshlrev_b32 v13, 1, v13\nv_xor_b32 v13, v13, v9\nv_lshlrev_b32 v13, 4, v13\nv_lshl_add_u32 v6, v8, 8, v13")
    e(f"v_and_b32 v7, 3, v0\nv_add_u32 v7, {slot(('ex',0,0))}, v7\nv_lshlrev_b32 v7, 13, v7")
    e("L_load:")
    L.extend(LD)
    e("s_endpgm")
    e(f"L_redo_l:\ns_waitcnt vmcnt(0)\ns_mov_b64 s[{S_NOREDO}:{S_NOREDO+1}], 0\ns_barrier\ns_branch L_load")
    e("L_compute:")
    if o["prio"]: e(f"s_setprio {o['prio']}")
    srd(e, S_WS, 18, 59, 268435456)
    e(f"s_mov_b32 s{S_SCALE}, {hex(f2u(math.log2(math.e) / math.sqrt(128.0)))}")
    e(f"s_and_b32 s51, s{S_W}, 1\ns_lshr_b32 s62, s{S_W}, 1")
    e("L_restart:")
    t = 200
    e(f"v_lshrrev_b32 v{t}, 4, v0\nv_and_b32 v{t+1}, 15, v0\nv_bfe_u32 v{t+2}, v0, 2, 2\nv_and_b32 v{t+3}, 3, v0")
    e(f"v_lshrrev_b32 v{t+4}, 5, v0\nv_and_b32 v{t+5}, 1, v{t}\nv_lshrrev_b32 v{t+6}, 1, v{t+2}")
    e(f"v_lshl_or_b32 v{t+7}, v{t+5}, 1, v{t+6}")
    e(f"s_lshl_b32 s63, s62, 12\nv_lshrrev_b32 v{t+8}, 1, v{t+1}\nv_xor_b32 v{t+8}, v{t+8}, v{t}\nv_lshlrev_b32 v{t+8}, 4, v{t+8}")
    e(f"v_lshl_add_u32 v{t+8}, v{t+1}, 7, v{t+8}\nv_add_u32 v{V_QA}, s63, v{t+8}\nv_xor_b32 v{V_QA+1}, 64, v{V_QA}")
    e(f"s_lshl_b32 s63, s51, 14\nv_lshl_add_u32 v{t+8}, v{t}, 3, v{t+2}\nv_lshlrev_b32 v{t+8}, 7, v{t+8}\nv_lshl_add_u32 v{t+8}, v{t+3}, 3, v{t+8}")
    e(f"v_lshl_add_u32 v{t+8}, v{t+7}, 5, v{t+8}\nv_add_u32 v{V_QA+2}, s63, v{t+8}")
    for d in range(1, 4): e(f"v_xor_b32 v{V_QA+2+d}, {32*d}, v{V_QA+2}")
    for st in (3, 1, 2):
        for i in range(6): e(f"v_add_u32 v{V_QA+6*st+i}, {40960*st}, v{V_QA+i}")
    e(f"v_and_b32 v{t+8}, 31, v0\nv_bfe_u32 v{t+9}, v0, 1, 3\nv_xor_b32 v{t+9}, v{t+9}, v{t+4}\nv_lshlrev_b32 v{t+9}, 4, v{t+9}")
    e(f"v_lshl_add_u32 v{V_KA}, v{t+8}, 7, v{t+9}")
    for s in range(1, 4): e(f"v_xor_b32 v{V_KA+s}, {32*s}, v{V_KA}")
    e(f"v_lshl_add_u32 v{t+8}, v{t+4}, 2, v{t+2}\nv_lshlrev_b32 v{t+8}, 7, v{t+8}\nv_lshl_add_u32 v{t+8}, v{t+3}, 3, v{t+8}")
    e(f"v_lshl_add_u32 v{t+9}, v{t+5}, 5, v{t+8}\nv_lshl_add_u32 v{V_VA}, v{t+6}, 6, v{t+9}\nv_xor_b32 v{V_VA+1}, 64, v{V_VA}")
    e(f"s_lshl_b32 s64, s51, 1\nv_lshl_add_u32 v{t+8}, v{t+5}, 10, v{t+8}\nv_xor_b32 v{t+9}, s64, v{t+7}\nv_lshl_add_u32 v{t+8}, v{t+9}, 5, v{t+8}")
    e(f"v_add_u32 v{V_OA}, s63, v{t+8}\nv_xor_b32 v{V_OA+1}, 32, v{V_OA}")
    e(f"v_xor_b32 v{V_OA+2}, 0x4000, v{V_OA}\nv_xor_b32 v{V_OA+3}, 0x4000, v{V_OA+1}")
    for wn in (1, 2):
        for i in range(4): e(f"v_add_u32 v{V_KA+4*wn+i}, {65536*wn}, v{V_KA+i}\nv_add_u32 v{V_OA+4*wn+i}, {65536*wn}, v{V_OA+i}")
        for i in range(2): e(f"v_add_u32 v{V_VA+2*wn+i}, {65536*wn}, v{V_VA+i}")
    ex0 = slot(("ex", 0, 0))
    assert ex0 % 2 == 0
    e(f"s_lshl_b32 s63, s{S_W}, 11\nv_lshl_add_u32 v{V_ST}, v0, 4, s63")
    e(f"s_add_u32 s63, s{S_W}, {ex0}\ns_lshl_b32 s63, s63, 13\nv_lshl_add_u32 v{V_XW}, v0, 4, s63\nv_xor_b32 v{V_XR}, 0x2000, v{V_XW}")
    e(f"v_add_u32 v{V_FL}, {ex0}, v{t+3}\nv_lshlrev_b32 v{V_FL}, 13, v{V_FL}")
    pi = 0
    for ins in code:
        e(ins.t if ins.k == "label" else "\t" + ins.t)
        if o["prof"] and ins.k == "bar" and ins.tag in ("Q0", "Q1", "Q4", "K0", "A1", "A8", "A15", "EX", "O1", "O4", "O8"):
            e(f"{'s_memrealtime' if o['prof'] == 2 else 's_memtime'} s[{66+2*pi}:{67+2*pi}]"); pi += 1
    if o["dump"]:
        n, base = (32, V_Q) if o["dump"] == "q" else (32, V_S)
        e("s_nop 7\ns_nop 7\ns_waitcnt lgkmcnt(0)")
        e(f"s_lshl_b32 s63, s{S_W}, 13\nv_lshl_add_u32 v{V_ST}, v0, 4, s63")
        for f in range(8):
            e(f"s_mov_b32 s{S_SOFF}, {f*1024}\nbuffer_store_dwordx4 v[{base+4*f}:{base+4*f+3}], v{V_ST}, s[{S_WS}:{S_WS+3}], s{S_SOFF} offen")
    if o["prof"]:
        e(f"s_memtime s[{66+2*pi}:{67+2*pi}]\ns_memrealtime s[92:93]\ns_waitcnt lgkmcnt(0)"); pi += 1
        if o["prof"] == 2: e(f"s_sub_u32 s{64+2*pi}, s{64+2*pi}, s60\ns_mov_b32 s60, 0")
        srd(e, S_X, 18, None, 268435456)
        e(f"s_lshl_b32 s63, s2, 2\ns_add_u32 s63, s63, s{S_W}\ns_lshl_b32 s63, s63, 6\ns_add_u32 s63, s63, {32 << 20}\nv_mov_b32 v1, 0")
        for i in range(pi): e(f"s_sub_u32 s{66+2*i}, s{66+2*i}, s60\nv_mov_b32 v{8+i}, s{66+2*i}")
        e(f"v_mov_b32 v{8+14}, s90\nv_mov_b32 v{8+15}, s92\ns_mov_b64 exec, 1")
        for i in range(4): e(f"buffer_store_dwordx4 v[{8+4*i}:{11+4*i}], v1, s[{S_X}:{S_X+3}], s63 offen offset:{16*i}")
    e("L_end1:\ns_endpgm")
    e("L_redo_c:\ns_waitcnt lgkmcnt(0)\ns_nop 7\ns_nop 7")
    e(f"v_and_b32 v{V_T0}, 31, v0\nv_lshrrev_b32 v{V_T1}, 5, v0\nv_lshlrev_b32 v{V_T1}, 4, v{V_T1}\nv_lshl_add_u32 v{V_T0}, v{V_T0}, 8, v{V_T1}")
    e(f"v_mov_b32 v{V_NEGM}, 0xff800000\ns_mov_b32 s{S_SOFF}, 0\nL_redo_loop:")
    for s in range(8): e(f"buffer_load_dwordx4 v[{200+4*s}:{203+4*s}], v{V_T0}, s[{S_K}:{S_K+3}], s{S_SOFF} offen offset:{32*s}")
    e("s_waitcnt vmcnt(0)")
    for s in range(8): e(mfma32(V_ACC, 200 + 4 * s, V_Q + 4 * s, None if s == 0 else V_ACC).t)
    e("s_nop 7\ns_nop 7")
    for i in range(8): e(f"v_max3_f32 v{V_NEGM}, v{V_ACC+2*i}, v{V_ACC+2*i+1}, v{V_NEGM}")
    e(f"s_add_u32 s{S_SOFF}, s{S_SOFF}, 8192\ns_cmp_lt_u32 s{S_SOFF}, 131072\ns_cbranch_scc1 L_redo_loop")
    e(f"v_mov_b32 v{V_T0}, v{V_NEGM}\ns_nop 1\nv_permlane32_swap_b32 v{V_T0}, v{V_NEGM}\ns_nop 1\nv_max_f32 v{V_NEGM}, v{V_NEGM}, v{V_T0}")
    e(f"v_sub_f32 v{V_NEGM}, 0, v{V_NEGM}\ns_mov_b64 s[{S_NOREDO}:{S_NOREDO+1}], 0\ns_barrier\ns_branch L_restart")
    e(KD.format(n=K1, v=256))
    e(f".globl {K2}\n.p2align 8\n.type {K2},@function\n{K2}:")
    e("s_cmp_ge_u32 s2, 144\ns_cbranch_scc1 L_end2")
    e("s_load_dwordx2 s[4:5], s[0:1], 40\ns_load_dwordx2 s[6:7], s[0:1], 56")
    e("s_lshl_b32 s3, s2, 13\nv_lshl_add_u32 v1, v0, 4, s3")
    e("s_mul_i32 s16, s2, 7282\ns_lshr_b32 s16, s16, 16\ns_mul_i32 s17, s16, 9\ns_sub_u32 s17, s2, s17")
    e("s_waitcnt lgkmcnt(0)")
    srd(e, 8, 6, None, 16 * 1179648); srd(e, 12, 4, None, 1179648)
    for p in range(16):
        e(f"s_mov_b32 s18, {p*1179648}\nbuffer_load_dwordx4 v[{16+4*p}:{19+4*p}], v1, s[8:11], s18 offen {o['k2ld']}".rstrip())
    e("v_lshrrev_b32 v2, 8, v0\nv_bfe_u32 v3, v0, 6, 1\nv_lshl_add_u32 v2, v2, 1, v3\nv_and_b32 v3, 15, v0\nv_lshl_add_u32 v2, v2, 4, v3")
    e("v_mul_u32_u24 v2, 1152, v2\nv_bfe_u32 v3, v0, 7, 1\nv_lshl_add_u32 v2, v3, 6, v2\nv_bfe_u32 v3, v0, 4, 1\nv_lshl_add_u32 v2, v3, 5, v2")
    e("v_bfe_u32 v3, v0, 5, 1\nv_lshl_add_u32 v2, v3, 4, v2\ns_mul_i32 s16, s16, 73728\ns_lshl_b32 s17, s17, 7\ns_add_u32 s16, s16, s17")
    for p in range(16):
        e(f"s_waitcnt vmcnt({15-p})")
        for j in range(4):
            x = 16 + 4 * p + j
            if p == 0: e(f"v_lshlrev_b32 v{4+2*j}, 16, v{x}\nv_and_b32 v{5+2*j}, 0xffff0000, v{x}")
            else: e(f"v_lshlrev_b32 v12, 16, v{x}\nv_and_b32 v13, 0xffff0000, v{x}\nv_pk_add_f32 v[{4+2*j}:{5+2*j}], v[{4+2*j}:{5+2*j}], v[12:13]")
    for j in range(4): e(f"v_cvt_pk_bf16_f32 v{12+j}, v{4+2*j}, v{5+2*j}")
    e("s_nop 1\nv_permlane16_swap_b32 v12, v14\nv_permlane16_swap_b32 v13, v15\ns_nop 1")
    e("buffer_store_dwordx4 v[12:15], v2, s[12:15], s16 offen\nL_end2:\ns_endpgm")
    e(KD.format(n=K2, v=80))
    return "\n".join(L) + "\n"

if __name__ == "__main__":
    kw = {}
    out = sys.argv[1]
    for a in sys.argv[2:]:
        k, v = a.split("=")
        try: v = int(v)
        except ValueError: pass
        kw[k] = v
    open(out, "w").write(gen(**kw))
```

```python
from asmlib import *
LDSLAT = 192
def isback(i): return i.k in ("mfma", "bar", "pin")
def lat_raw(p, c, ldslat):
    if p.k == "mfma":
        if c.k == "mfma" and p.w == c.c and not (p.w & c.r): return 0
        return p.passes * 4 + 20
    if p.k == "ldsr": return ldslat
    if p.k in ("valu", "trans", "perm"):
        base = 4 * p.cost
        if c.k in ("mfma", "perm"): return base + 8
        if p.k == "trans": return base + 4
        return base
    return 4
def schedule(prog, ldslat=LDSLAT, verbose=False):
    n = len(prog)
    preds = [dict() for _ in range(n)]
    lastw = {}; readers = {}
    def dep(a, b, l):
        if a == b: return
        preds[b][a] = max(preds[b].get(a, -1), l)
    lastlds = None
    for i, ins in enumerate(prog):
        for g in ins.r | ins.c:
            if g in lastw:
                p = prog[lastw[g]]
                dep(lastw[g], i, 4 if isinstance(g, str) else lat_raw(p, ins, ldslat))
        for g in ins.w:
            if g in lastw:
                p = prog[lastw[g]]
                dep(lastw[g], i, 4 if isinstance(g, str) else lat_raw(p, ins, ldslat))
            for j in readers.get(g, ()):
                p = prog[j]
                l = 4
                if p.k == "mfma" and g in p.c and ins.k != "mfma": l = p.passes * 4 + 4
                if p.k == "vst": l = 16
                dep(j, i, l)
        for g in ins.r | ins.c: readers.setdefault(g, []).append(i)
        for g in ins.w: lastw[g] = i; readers[g] = []
    back = [i for i in range(n) if isback(prog[i])]
    succs = [[] for _ in range(n)]
    for b in range(n):
        for a, l in preds[b].items(): succs[a].append((b, l))
    T = {}; t = 0
    for i in back:
        T[i] = t
        if prog[i].k == "mfma": t += prog[i].passes * 4
    END = t + 64
    order = None
    for it in range(3):
        dl = [0] * n
        for i in range(n - 1, -1, -1):
            if isback(prog[i]): dl[i] = T[i]; continue
            d = END
            for (s, l) in succs[i]: d = min(d, dl[s] - l)
            dl[i] = d
        issued = [None] * n
        npred = [len(p) for p in preds]
        rdy = [0] * n
        avail = set(i for i in range(n) if npred[i] == 0 and not isback(prog[i]))
        order = []
        t = 0; pipe = 0; vfree = 0; bi = 0
        def issue(i, ti):
            issued[i] = ti; order.append(i)
            for (s, l) in succs[i]:
                npred[s] -= 1; rdy[s] = max(rdy[s], ti + l)
                if npred[s] == 0 and not isback(prog[s]): avail.add(s)
        while bi < len(back) or avail:
            B = back[bi] if bi < len(back) else None
            tB = None
            if B is not None and npred[B] == 0:
                pb = prog[B]
                tB = max(t, rdy[B])
                if pb.k == "mfma": tB = max(tB, pipe, vfree)
            best = None
            for f in avail:
                ins = prog[f]
                ts = max(t, rdy[f]) if ins.k == "salu" else max(t, vfree, rdy[f])
                if tB is not None and ts + 4 * ins.cost > tB:
                    if not (ts <= tB and dl[f] - T[B] < 8 and prog[B].k == "mfma"): continue
                key = (ts > max(t, vfree), ts if ts > max(t, vfree) else 0, dl[f], f)
                if best is None or key < best[0]: best = (key, f, ts)
            if best is not None:
                _, f, ts = best
                avail.discard(f); issue(f, ts); t = ts + 4 * prog[f].cost
                continue
            assert tB is not None, "deadlock"
            issue(B, tB); bi += 1
            if prog[B].k == "mfma":
                pipe = tB + prog[B].passes * 4; vfree = tB + 8
            t = tB + 4 * prog[B].cost
        assert len(order) == n
        for i in back: T[i] = min(issued[i], T[i] + 10**9) if it < 2 else T[i]
        END = max(t, pipe) + 64
        if verbose: print("sched iter", it, "cycles", max(t, pipe))
    return [prog[i] for i in order], [issued[i] for i in order]
```

```python
import gen
def meas(base, idx, mode, c=4):
    L = []; e = L.append
    e(".globl meas_kernel\n.p2align 8\n.type meas_kernel,@function\nmeas_kernel:")
    e("s_cmp_ge_u32 s2, 1\ns_cbranch_scc1 L_mend")
    e("s_memrealtime s[20:21]\ns_load_dwordx2 s[6:7], s[0:1], 56\ns_waitcnt lgkmcnt(0)")
    gen.srd(e, 8, 6, None, 268435456)
    e(f"v_lshlrev_b32 v1, 8, v0")
    for i in range(4):
        e(f"s_mov_b32 s18, {(32 << 20) + i * 16384}")
        e(f"buffer_load_dword v{2+i}, v1, s[8:11], s18 offen offset:56 sc1")
        e(f"buffer_load_dword v{6+i}, v1, s[8:11], s18 offen offset:{4 * (idx if idx != 'now' else 14)} sc1")
    e("s_waitcnt vmcnt(0)\nv_min_u32 v2, v2, v3\nv_min_u32 v4, v4, v5\nv_min_u32 v2, v2, v4\ns_mov_b32 s22, -1\ns_nop 1")
    for l in range(64): e(f"v_readlane_b32 s23, v2, {l}\ns_min_u32 s22, s22, s23")
    if mode == "raw": e("s_mov_b32 s22, 0")
    for i in range(4): e(f"v_subrev_u32 v{6+i}, s22, v{6+i}")
    op = {"max": "max_u32", "min": "min_u32"}.get(mode, "add_u32")
    e(f"v_{op} v6, v6, v7\nv_{op} v8, v8, v9\nv_{op} v6, v6, v8\ns_mov_b32 s24, {-1 if mode == 'min' else 0}\ns_nop 1")
    for l in range(64): e(f"v_readlane_b32 s23, v6, {l}\ns_{op} s24, s24, s23")
    if mode == "mean": e("s_lshr_b32 s24, s24, 8")
    if mode == "raw": e("s_lshr_b32 s24, s24, 12")
    if idx == "now": e("s_sub_u32 s24, s20, s22")
    e(f"s_min_u32 s24, s24, 6000\ns_mul_i32 s24, s24, {c}")
    e("s_memrealtime s[26:27]\ns_waitcnt lgkmcnt(0)")
    e("L_mspin:\ns_memrealtime s[28:29]\ns_waitcnt lgkmcnt(0)\ns_sub_u32 s28, s28, s26\ns_cmp_lt_u32 s28, s24\ns_cbranch_scc1 L_mspin")
    e("L_mend:\ns_endpgm")
    e(gen.KD.format(n="meas_kernel", v=16))
    lines = base.split("\n")
    last = max(i for i, l in enumerate(lines) if l.startswith("; @launch"))
    lines.insert(last + 1, "; @launch kernel=meas_kernel grid=(1,1,1) block=(64,1,1) lds=0")
    return "\n".join(lines) + "\n".join(L) + "\n"
if __name__ == "__main__":
    import sys
    kw = {}
    specs = []
    for a in sys.argv[1:]:
        if "=" in a:
            k, v = a.split("=")
            try: v = int(v)
            except ValueError: pass
            kw[k] = v
        else: specs.append(a)
    base = gen.gen(prof=2, **kw)
    for i, sp in enumerate(specs):
        idx, mode, c = sp.split(":")
        open(f"../m{i+1}.s", "w").write(meas(base, idx if idx == "now" else int(idx), mode, int(c)))
```

```python
import sys, struct, math
from asmlib import *
from sched import schedule

def f2u(x): return struct.unpack("<I", struct.pack("<f", x))[0]
DEF = dict(ldslat=192, la_q=5, att_rate=4, o_rate=4, barq=10, bara=6, baro=10, kvmod="", wmod="", stmod="sc1", k2ld="",
           prof=0, dump="", ochain=1, prio=0, force_redo=0)

V_L, V_ST, V_XW, V_XR, V_FL, V_T0, V_T1 = 1, 2, 3, 4, 5, 6, 7
V_KA, V_VA, V_OA, V_NEGM = 8, 20, 26, 38
V_ACC, V_Q, V_S, V_CI, V_P, V_RING, NRING = 40, 104, 136, 168, 184, 200, 14
V_QA = 136
S_X, S_K, S_V, S_WQ, S_WO, S_WS = 24, 28, 32, 36, 40, 44
S_W, S_SCALE, S_SOFF, S_MASK, S_NOREDO, S_LW = 20, 21, 22, 23, 48, 50
SLOT0, NSLOT, USZ = 15, 20, 8192

def units():
    U = []
    for s in range(9):
        U.append(("x", s, 0))
        for cq in range(4): U.append(("wq", s, cq))
    U.append(("k", 0, 0))
    for j in range(15): U += [("k", j + 1, 0), ("v", j, 0)]
    U.append(("v", 15, 0))
    for w in range(4): U.append(("ex", w, 0))
    for s in range(9):
        for u in range(4): U.append(("wo", s, u))
    return U
UN = units(); UI = {u: i for i, u in enumerate(UN)}
def slot(u): return (SLOT0 + UI[u]) % NSLOT
def pu(u): return "U%d" % UI[u]

class Ring:
    def __init__(s): s.i = 0
    def get(s):
        r = V_RING + 4 * (s.i % NRING); s.i += 1; return r

def compute_prog(o):
    P = []; ring = Ring()
    a = P.append
    bars = []
    marks = {}
    nm = [0]
    def M(i): a(i); nm[0] += 1
    def rdu(ins, *us):
        ins.unit = [UI[u] for u in us]
        for u in us: ins.r.add(pu(u))
        return ins
    def needbar(name, us, ahead): bars.append((name, us, max(0, nm[0] - ahead)))
    for i in range(16): a(valu("v_mov_b32", V_CI + i, V_NEGM))
    a(valu("v_mov_b32", V_L, "0"))
    for s in range(9):
        needbar("Q%d" % s, [("x", s, 0)] + [("wq", s, c) for c in range(4)], o["barq"])
        ab = V_QA + 6 * (slot(("x", s, 0)) // 5)
        xs = V_P if s % 2 == 0 else V_Q
        for ks in range(2):
            for qb in range(2):
                a(rdu(rd128(xs + 4 * (2 * qb + ks), ab + ks, qb * 2048), ("x", s, 0)))
        for db in range(8):
            fr = []
            for ks in range(2):
                r = ring.get(); fr.append(r)
                for u in range(2):
                    a(rdu(rdtr(r + 2 * u, ab + 2 + (db & 3), USZ * (1 + (db >> 2)) + ks * 4096 + u * 512),
                          ("wq", s, db >> 2), ("wq", s, 2 + (db >> 2))))
            for qb in range(2):
                acc = V_ACC + 4 * (2 * db + qb)
                for ks in range(2):
                    M(mfma16(acc, fr[ks], xs + 4 * (2 * qb + ks), None if (s == 0 and ks == 0) else acc))
            if s == 8:
                q = V_Q + 4 * db
                for qb in range(2):
                    acc = V_ACC + 4 * (2 * db + qb)
                    for r in range(4): a(valu("v_mul_f32", acc + r, f"s{S_SCALE}", acc + r))
                    for e in range(2): a(valu("v_cvt_pk_bf16_f32", q + 2 * qb + e, acc + 2 * e, acc + 2 * e + 1))
                a(swap16(q, q + 2)); a(swap16(q + 1, q + 3))
    if o["dump"] == "q": return P, bars
    def win(u):
        b = slot(u) * USZ; return b >> 16, b & 0xffff
    def qk(j):
        S = V_S + 16 * (j & 1); u = ("k", j, 0); wn, off = win(u)
        for s in range(8):
            r = ring.get()
            a(rdu(rd128(r, V_KA + 4 * wn + (s & 3), off + (s >> 2) * 4096), u))
            M(mfma32(S, r, V_Q + 4 * s, V_CI if s == 0 else S))
    def sm(j):
        S = V_S + 16 * (j & 1); Pj = V_P + 8 * (j & 1)
        for e in range(8):
            for h in range(2):
                a(vexp(S + 2 * e + h, S + 2 * e + h))
            a(valu("v_cvt_pk_bf16_f32", Pj + e, S + 2 * e, S + 2 * e + 1))
            for h in range(2):
                a(valu("v_add_f32", V_L, V_L, S + 2 * e + h))
    def pv(j, after=None):
        Pj = V_P + 8 * (j & 1); u = ("v", j, 0); wn, off = win(u)
        for t in range(2):
            for db in range(4):
                r = ring.get()
                for uu in range(2):
                    a(rdu(rdtr(r + 2 * uu, V_VA + 2 * wn + (db & 1), off + (db >> 1) * 4096 + (16 * t + 8 * uu) * 128), u))
                O = V_ACC + 16 * db
                M(mfma32(O, r, Pj + 4 * t, None if (j == 0 and t == 0) else O))
                if after and t == 1: after(db)
    needbar("K0", [("k", 0, 0)], o["barq"])
    qk(0); sm(0)
    for j in range(15):
        needbar("A%d" % j, [("k", j + 1, 0), ("v", j, 0)], o["bara"])
        qk(j + 1); sm(j + 1)
        pv(j)
    needbar("A15", [("v", 15, 0)] + [("ex", w, 0) for w in range(4)] + [("wo", 0, u) for u in range(4)], o["bara"])
    a(valu("v_mov_b32", V_T0, V_L)); a(swap32(V_T0, V_L)); a(valu("v_add_f32", V_L, V_L, V_T0))
    a(vrcp(V_T1, V_L))
    lo, hi = f2u(2.0 ** -24), f2u(2.0 ** 24)
    if o["force_redo"]: lo, hi = f2u(2.0 ** 30), f2u(2.0 ** 31)
    a(valu("v_subrev_u32", V_T0, hex(lo), V_L))
    a(I(f"v_cmp_le_u32 vcc, {hex(hi - lo)}, v{V_T0}", "valu", r=[V_T0], w=["vcc"]))
    a(I(f"s_and_b64 vcc, vcc, s[{S_NOREDO}:{S_NOREDO+1}]\n\ts_cselect_b32 s{S_MASK}, -1, 0", "salu", r=["vcc"], w=["vcc", "mask"], cost=2))
    BO, BX = V_S, V_CI
    def norm(db):
        O = V_ACC + 16 * db; B = BO + 8 * db
        for i, d in ((0, 0), (1, 4), (2, 2), (3, 6)):
            for r in range(4): a(valu("v_mul_f32", O + 4 * i + r, O + 4 * i + r, V_T1))
            for e in range(2): a(valu("v_cvt_pk_bf16_f32", B + d + e, O + 4 * i + 2 * e, O + 4 * i + 2 * e + 1))
            if i & 1:
                for e in range(2): a(swap16(B + d - 4 + e, B + d + e))
        if db == 0:
            x = valu("v_or_b32", B, f"s{S_MASK}", B); x.r.add("mask"); a(x)
        for qb in range(2):
            x = wr128(V_XW, B + 4 * qb, (2 * db + qb) * 1024); x.r.add(pu(("ex", 0, 0))); x.w.add("X%d" % (2 * db + qb)); a(x)
    pv(15, norm)
    if o["dump"] == "o": return P, bars
    exu = [("ex", w, 0) for w in range(4)]
    for s in range(9):
        if s: needbar("O%d" % s, [("wo", s, u) for u in range(4)], o["baro"])
        b = slot(("wo", s, 0)) * USZ; wn, off = b >> 16, b & 0xffff
        acc0 = V_ACC + 16 * (s & 1); stg = V_ACC + 32 + 8 * (s & 1)
        def ld(own, db, nb):
            r = ring.get()
            for u in range(2):
                a(rdu(rdtr(r + 2 * u, V_OA + 4 * wn + 2 * (1 - own) + nb, off + (db >> 1) * USZ + (db & 1) * 4096 + u * 2048),
                      ("wo", s, db >> 1), ("wo", s, 2 + (db >> 1))))
            return r
        def mm(own, db, nb, qb, r):
            acc = acc0 + 4 * (2 * qb + nb)
            M(mfma16(acc, r, (BO if own else BX) + 8 * db + 4 * qb, None if (own and db == 0) else acc))
        for own in (1, 0):
            if s == 0 and own == 0:
                x = barrier("EX"); x.r |= set("X%d" % f for f in range(8)); x.w.add("EXD"); a(x)
                for f in range(8):
                    x = rd128(BX + 4 * f, V_XR, f * 1024); x.r.add("EXD"); x.unit = [UI[u] for u in exu]; a(x)
                x = I(f"ds_read_b32 v{V_T0}, v{V_FL}", "ldsr", r=[V_FL, "EXD"], w=[V_T0], unit=[UI[u] for u in exu]); a(x)
                a(I(f"v_cmp_eq_u32 vcc, -1, v{V_T0}", "valu", r=[V_T0], w=["vcc"]))
            if o["ochain"] == 1 or s == 0:
                for db in range(4):
                    for nb in range(2):
                        r = ld(own, db, nb)
                        for qb in range(2): mm(own, db, nb, qb, r)
                    if s == 0 and own == 0 and db == 0:
                        a(I(f"s_and_b64 vcc, vcc, s[{S_NOREDO}:{S_NOREDO+1}]\n\ts_cbranch_scc1 L_redo_c", "pin", r=["vcc"], w=["vcc"], cost=2))
            else:
                for nb in range(2):
                    rs = [ld(own, db, nb) for db in range(4)]
                    for qb in range(2):
                        for db in range(4): mm(own, db, nb, qb, rs[db])
        a(I(f"s_mov_b32 s{S_SOFF}, {s * 8192}", "salu", w=["soff"]))
        for qb in range(2):
            for nb in range(2):
                acc = acc0 + 4 * (2 * qb + nb)
                for e in range(2): a(valu("v_cvt_pk_bf16_f32", stg + 4 * qb + 2 * nb + e, acc + 2 * e, acc + 2 * e + 1))
            x = store4(stg + 4 * qb, V_ST, S_WS, f"s{S_SOFF}", o["stmod"], qb * 1024); x.r.add("soff"); a(x)
    return P, bars

def place_barriers(P, bars):
    out = []; n = 0; bi = 0
    def flush():
        nonlocal bi
        while bi < len(bars) and bars[bi][2] <= n:
            x = barrier(bars[bi][0]); x.w |= set(pu(u) for u in bars[bi][1]); x.unit = [UI[u] for u in bars[bi][1]]
            out.append(x); bi += 1
    flush()
    for ins in P:
        if ins.k == "bar" or ins.k == "pin":
            out.append(ins); continue
        out.append(ins)
        if ins.k == "mfma":
            n += 1; flush()
    assert bi == len(bars)
    return out

def analyse(code):
    bl = []; need = {}; lastrd = {}; n = 0; done = 0; donebar = []
    for ins in code:
        if ins.k == "wait": done = max(done, ins.tag)
        if ins.k in ("ldsr", "ldsw"):
            if ins.k == "ldsr":
                for u in ins.unit: lastrd[u] = n
            n += 1
        if ins.k == "bar":
            for u in (ins.unit or []): need[u] = len(bl)
            bl.append(ins.tag); donebar.append(done)
    free = {}
    for u, q in lastrd.items():
        f = [b for b in range(len(bl)) if donebar[b] > q]
        free[u] = f[0] if f else None
    return bl, need, free

def loader(o, bl, need, free):
    L = []; e = L.append
    nb = len(bl)
    todo = [u for u in range(len(UN)) if u in need]
    issued = []
    def emit(u):
        k, p, q = UN[u]
        if k == "ex": return
        for h in range(2):
            if k == "x": srd, va, so, md = S_X, 2, p * 128 + h * 36864, o["wmod"]
            if k == "wq": srd, va, so, md = S_WQ, 3, (64 * p + 32 * h) * 8192 + q * 128, o["wmod"]
            if k == "wo": srd, va, so, md = S_WO, 4, (64 * q + 32 * h) * 1152 + p * 128, o["wmod"]
            if k == "k": srd, va, so, md = S_K, 5, p * 8192 + h * 128, o["kvmod"]
            if k == "v": srd, va, so, md = S_V, 6, p * 8192 + h * 128, o["kvmod"]
            e(f"s_add_u32 m0, s{S_LW}, {slot(UN[u]) * USZ + h * 4096}")
            e(f"s_mov_b32 s{S_SOFF}, {so}")
            e(f"buffer_load_dwordx4 v{va}, s[{srd}:{srd+3}], s{S_SOFF} offen {md} lds".replace("  ", " "))
        issued.append(u)
    nxt = 0
    plan = []
    for b in range(nb):
        must = max([u for u in todo if need[u] <= b], default=-1)
        name = bl[b]
        rate = 99 if name[0] in "QK" else (o["att_rate"] if name[0] == "A" else o["o_rate"])
        cnt = 0
        while nxt < len(todo):
            u = todo[nxt]
            ok = u < NSLOT or (free.get(u - NSLOT) is not None and free[u - NSLOT] <= b - 1)
            if UN[u][0] == "ex":
                assert free[u - NSLOT] <= need[u]
                nxt += 1; continue
            if u <= must: assert ok, ("ring too small", UN[u], name)
            elif not ok or cnt >= rate or (name[0] in "QK" and u > must + o["la_q"]): break
            emit(u); nxt += 1; cnt += 1
        land = [i for i, u in enumerate(issued) if need[u] <= b]
        w = 2 * (len(issued) - 1 - max(land)) if land else None
        plan.append((name, cnt, w))
        if w is not None and any(need[u] == b for u in issued): e(f"s_waitcnt vmcnt({min(w, 63)})")
        e("s_barrier")
        if name == "EX":
            e(f"ds_read_b32 v8, v7\ns_waitcnt lgkmcnt(0)\nv_cmp_eq_u32 vcc, -1, v8\ns_nop 1")
            e(f"s_and_b64 vcc, vcc, s[{S_NOREDO}:{S_NOREDO+1}]\ns_cbranch_scc1 L_redo_l")
    assert nxt == len(todo)
    return L, plan

KD = '''.section .rodata,"a"
.p2align 6
.amdhsa_kernel {n}
  .amdhsa_next_free_vgpr {v}
  .amdhsa_next_free_sgpr 102
  .amdhsa_accum_offset {v}
  .amdhsa_group_segment_fixed_size 0
  .amdhsa_kernarg_size 64
  .amdhsa_user_sgpr_count 2
  .amdhsa_user_sgpr_kernarg_segment_ptr 1
  .amdhsa_system_sgpr_workgroup_id_x 1
.end_amdhsa_kernel
.text'''
K1, K2 = "standalone__gqa_block_cached__near_ridge_kernel", "gqa_reduce_kernel"

def srd(e, d, p, off, size):
    if off is None:
        e(f"s_mov_b32 s{d}, s{p}\ns_mov_b32 s{d+1}, s{p+1}\ns_mov_b32 s{d+2}, {size}\ns_mov_b32 s{d+3}, 0x20000")
    else:
        e(f"s_add_u32 s{d}, s{p}, s{off}\ns_addc_u32 s{d+1}, s{p+1}, 0\ns_sub_u32 s{d+2}, {size}, s{off}\ns_mov_b32 s{d+3}, 0x20000")

def gen(**kw):
    o = dict(DEF); o.update(kw)
    P, bars = compute_prog(o)
    P = place_barriers(P, bars)
    code, times = schedule(P, o["ldslat"], o.get("verbose"))
    code = insert_waits(code)
    code, pad = fix_hazards(code, o.get("verbose", 0) > 1)
    bl, need, free = analyse(code)
    LD, plan = loader(o, bl, need, free)
    if o.get("verbose"):
        print("est cycles", est_cycles(code), "nop pad", pad, "instrs", len(code)); print(plan)
    L = []; e = L.append
    e(f"; @launch kernel={K1} grid=(256,1,1) block=(512,1,1) lds=163840")
    e(f"; @launch kernel={K2} grid=(144,1,1) block=(512,1,1) lds=0")
    e('.amdgcn_target "amdgcn-amd-amdhsa--gfx950"\n.text')
    e(f".globl {K1}\n.p2align 8\n.type {K1},@function\n{K1}:")
    e("s_cmp_ge_u32 s2, 256\ns_cbranch_scc1 L_end1")
    e("s_load_dwordx8 s[4:11], s[0:1], 0\ns_load_dwordx8 s[12:19], s[0:1], 32")
    if o["prof"]: e("s_memtime s[60:61]\ns_memrealtime s[90:91]")
    e(f"v_lshrrev_b32 v1, 6, v0\nv_and_b32 v0, 63, v0\nv_readfirstlane_b32 s{S_W}, v1")
    e("s_and_b32 s51, s2, 7\ns_lshr_b32 s54, s2, 3\ns_and_b32 s52, s54, 1\ns_lshl1_add_u32 s52, s51, s52")
    e("s_lshr_b32 s53, s54, 1\ns_lshr_b32 s54, s54, 2")
    e("s_mul_i32 s55, s53, 73728\ns_lshl_b32 s56, s52, 9\ns_mul_i32 s57, s52, 294912")
    e("s_lshl4_add_u32 s58, s54, s52\ns_lshl_b32 s58, s58, 17")
    e("s_mul_i32 s59, s52, 1179648\ns_add_u32 s59, s59, s55")
    e(f"s_mov_b64 s[{S_NOREDO}:{S_NOREDO+1}], -1\nv_mov_b32 v{V_NEGM}, 0")
    e("s_waitcnt lgkmcnt(0)")
    srd(e, S_X, 4, 55, 1179648); srd(e, S_WQ, 10, 56, 4718592); srd(e, S_K, 6, 58, 16777216)
    e(f"s_cmp_lt_u32 s{S_W}, 4\ns_cbranch_scc1 L_compute")
    srd(e, S_V, 8, 58, 16777216); srd(e, S_WO, 12, 57, 4718592)
    e(f"s_sub_u32 s51, s{S_W}, 4\ns_lshl_b32 s{S_LW}, s51, 10\ns_lshl_b32 s51, s51, 3")
    e("v_lshrrev_b32 v8, 3, v0\nv_add_u32 v8, s51, v8\nv_and_b32 v9, 7, v0")
    e("v_bfe_u32 v10, v8, 1, 3\nv_xor_b32 v10, v10, v9\nv_lshlrev_b32 v10, 4, v10")
    e("v_mul_u32_u24 v11, 1152, v8\nv_add_u32 v2, v11, v10")
    e("v_bfe_u32 v12, v8, 3, 1\nv_and_b32 v13, 2, v8\nv_lshl_or_b32 v12, v12, 2, v13\nv_xor_b32 v12, v12, v9\nv_lshlrev_b32 v12, 4, v12")
    e("v_lshl_add_u32 v3, v8, 13, v12\nv_add_u32 v4, v11, v12\nv_lshl_add_u32 v5, v8, 8, v10")
    e("v_lshlrev_b32 v13, 1, v13\nv_xor_b32 v13, v13, v9\nv_lshlrev_b32 v13, 4, v13\nv_lshl_add_u32 v6, v8, 8, v13")
    e(f"v_and_b32 v7, 3, v0\nv_add_u32 v7, {slot(('ex',0,0))}, v7\nv_lshlrev_b32 v7, 13, v7")
    e("L_load:")
    L.extend(LD)
    e("s_endpgm")
    e(f"L_redo_l:\ns_waitcnt vmcnt(0)\ns_mov_b64 s[{S_NOREDO}:{S_NOREDO+1}], 0\ns_barrier\ns_branch L_load")
    e("L_compute:")
    if o["prio"]: e(f"s_setprio {o['prio']}")
    srd(e, S_WS, 18, 59, 268435456)
    e(f"s_mov_b32 s{S_SCALE}, {hex(f2u(math.log2(math.e) / math.sqrt(128.0)))}")
    e(f"s_and_b32 s51, s{S_W}, 1\ns_lshr_b32 s62, s{S_W}, 1")
    e("L_restart:")
    t = 200
    e(f"v_lshrrev_b32 v{t}, 4, v0\nv_and_b32 v{t+1}, 15, v0\nv_bfe_u32 v{t+2}, v0, 2, 2\nv_and_b32 v{t+3}, 3, v0")
    e(f"v_lshrrev_b32 v{t+4}, 5, v0\nv_and_b32 v{t+5}, 1, v{t}\nv_lshrrev_b32 v{t+6}, 1, v{t+2}")
    e(f"v_lshl_or_b32 v{t+7}, v{t+5}, 1, v{t+6}")
    e(f"s_lshl_b32 s63, s62, 12\nv_lshrrev_b32 v{t+8}, 1, v{t+1}\nv_xor_b32 v{t+8}, v{t+8}, v{t}\nv_lshlrev_b32 v{t+8}, 4, v{t+8}")
    e(f"v_lshl_add_u32 v{t+8}, v{t+1}, 7, v{t+8}\nv_add_u32 v{V_QA}, s63, v{t+8}\nv_xor_b32 v{V_QA+1}, 64, v{V_QA}")
    e(f"s_lshl_b32 s63, s51, 14\nv_lshl_add_u32 v{t+8}, v{t}, 3, v{t+2}\nv_lshlrev_b32 v{t+8}, 7, v{t+8}\nv_lshl_add_u32 v{t+8}, v{t+3}, 3, v{t+8}")
    e(f"v_lshl_add_u32 v{t+8}, v{t+7}, 5, v{t+8}\nv_add_u32 v{V_QA+2}, s63, v{t+8}")
    for d in range(1, 4): e(f"v_xor_b32 v{V_QA+2+d}, {32*d}, v{V_QA+2}")
    for st in (3, 1, 2):
        for i in range(6): e(f"v_add_u32 v{V_QA+6*st+i}, {40960*st}, v{V_QA+i}")
    e(f"v_and_b32 v{t+8}, 31, v0\nv_bfe_u32 v{t+9}, v0, 1, 3\nv_xor_b32 v{t+9}, v{t+9}, v{t+4}\nv_lshlrev_b32 v{t+9}, 4, v{t+9}")
    e(f"v_lshl_add_u32 v{V_KA}, v{t+8}, 7, v{t+9}")
    for s in range(1, 4): e(f"v_xor_b32 v{V_KA+s}, {32*s}, v{V_KA}")
    e(f"v_lshl_add_u32 v{t+8}, v{t+4}, 2, v{t+2}\nv_lshlrev_b32 v{t+8}, 7, v{t+8}\nv_lshl_add_u32 v{t+8}, v{t+3}, 3, v{t+8}")
    e(f"v_lshl_add_u32 v{t+9}, v{t+5}, 5, v{t+8}\nv_lshl_add_u32 v{V_VA}, v{t+6}, 6, v{t+9}\nv_xor_b32 v{V_VA+1}, 64, v{V_VA}")
    e(f"s_lshl_b32 s64, s51, 1\nv_lshl_add_u32 v{t+8}, v{t+5}, 10, v{t+8}\nv_xor_b32 v{t+9}, s64, v{t+7}\nv_lshl_add_u32 v{t+8}, v{t+9}, 5, v{t+8}")
    e(f"v_add_u32 v{V_OA}, s63, v{t+8}\nv_xor_b32 v{V_OA+1}, 32, v{V_OA}")
    e(f"v_xor_b32 v{V_OA+2}, 0x4000, v{V_OA}\nv_xor_b32 v{V_OA+3}, 0x4000, v{V_OA+1}")
    for wn in (1, 2):
        for i in range(4): e(f"v_add_u32 v{V_KA+4*wn+i}, {65536*wn}, v{V_KA+i}\nv_add_u32 v{V_OA+4*wn+i}, {65536*wn}, v{V_OA+i}")
        for i in range(2): e(f"v_add_u32 v{V_VA+2*wn+i}, {65536*wn}, v{V_VA+i}")
    ex0 = slot(("ex", 0, 0))
    assert ex0 % 2 == 0
    e(f"s_lshl_b32 s63, s{S_W}, 11\nv_lshl_add_u32 v{V_ST}, v0, 4, s63")
    e(f"s_add_u32 s63, s{S_W}, {ex0}\ns_lshl_b32 s63, s63, 13\nv_lshl_add_u32 v{V_XW}, v0, 4, s63\nv_xor_b32 v{V_XR}, 0x2000, v{V_XW}")
    e(f"v_add_u32 v{V_FL}, {ex0}, v{t+3}\nv_lshlrev_b32 v{V_FL}, 13, v{V_FL}")
    pi = 0
    for ins in code:
        e(ins.t if ins.k == "label" else "\t" + ins.t)
        if o["prof"] and ins.k == "bar" and ins.tag in ("Q0", "Q1", "Q4", "K0", "A1", "A8", "A15", "EX", "O1", "O4", "O8"):
            e(f"{'s_memrealtime' if o['prof'] == 2 else 's_memtime'} s[{66+2*pi}:{67+2*pi}]"); pi += 1
    if o["dump"]:
        n, base = (32, V_Q) if o["dump"] == "q" else (32, V_S)
        e("s_nop 7\ns_nop 7\ns_waitcnt lgkmcnt(0)")
        e(f"s_lshl_b32 s63, s{S_W}, 13\nv_lshl_add_u32 v{V_ST}, v0, 4, s63")
        for f in range(8):
            e(f"s_mov_b32 s{S_SOFF}, {f*1024}\nbuffer_store_dwordx4 v[{base+4*f}:{base+4*f+3}], v{V_ST}, s[{S_WS}:{S_WS+3}], s{S_SOFF} offen")
    if o["prof"]:
        e(f"s_memtime s[{66+2*pi}:{67+2*pi}]\ns_memrealtime s[92:93]\ns_waitcnt lgkmcnt(0)"); pi += 1
        if o["prof"] == 2: e(f"s_sub_u32 s{64+2*pi}, s{64+2*pi}, s60\ns_mov_b32 s60, 0")
        srd(e, S_X, 18, None, 268435456)
        e(f"s_lshl_b32 s63, s2, 2\ns_add_u32 s63, s63, s{S_W}\ns_lshl_b32 s63, s63, 6\ns_add_u32 s63, s63, {32 << 20}\nv_mov_b32 v1, 0")
        for i in range(pi): e(f"s_sub_u32 s{66+2*i}, s{66+2*i}, s60\nv_mov_b32 v{8+i}, s{66+2*i}")
        e(f"v_mov_b32 v{8+14}, s90\nv_mov_b32 v{8+15}, s92\ns_mov_b64 exec, 1")
        for i in range(4): e(f"buffer_store_dwordx4 v[{8+4*i}:{11+4*i}], v1, s[{S_X}:{S_X+3}], s63 offen offset:{16*i}")
    e("L_end1:\ns_endpgm")
    e("L_redo_c:\ns_waitcnt lgkmcnt(0)\ns_nop 7\ns_nop 7")
    e(f"v_and_b32 v{V_T0}, 31, v0\nv_lshrrev_b32 v{V_T1}, 5, v0\nv_lshlrev_b32 v{V_T1}, 4, v{V_T1}\nv_lshl_add_u32 v{V_T0}, v{V_T0}, 8, v{V_T1}")
    e(f"v_mov_b32 v{V_NEGM}, 0xff800000\ns_mov_b32 s{S_SOFF}, 0\nL_redo_loop:")
    for s in range(8): e(f"buffer_load_dwordx4 v[{200+4*s}:{203+4*s}], v{V_T0}, s[{S_K}:{S_K+3}], s{S_SOFF} offen offset:{32*s}")
    e("s_waitcnt vmcnt(0)")
    for s in range(8): e(mfma32(V_ACC, 200 + 4 * s, V_Q + 4 * s, None if s == 0 else V_ACC).t)
    e("s_nop 7\ns_nop 7")
    for i in range(8): e(f"v_max3_f32 v{V_NEGM}, v{V_ACC+2*i}, v{V_ACC+2*i+1}, v{V_NEGM}")
    e(f"s_add_u32 s{S_SOFF}, s{S_SOFF}, 8192\ns_cmp_lt_u32 s{S_SOFF}, 131072\ns_cbranch_scc1 L_redo_loop")
    e(f"v_mov_b32 v{V_T0}, v{V_NEGM}\ns_nop 1\nv_permlane32_swap_b32 v{V_T0}, v{V_NEGM}\ns_nop 1\nv_max_f32 v{V_NEGM}, v{V_NEGM}, v{V_T0}")
    e(f"v_sub_f32 v{V_NEGM}, 0, v{V_NEGM}\ns_mov_b64 s[{S_NOREDO}:{S_NOREDO+1}], 0\ns_barrier\ns_branch L_restart")
    e(KD.format(n=K1, v=256))
    e(f".globl {K2}\n.p2align 8\n.type {K2},@function\n{K2}:")
    e("s_cmp_ge_u32 s2, 144\ns_cbranch_scc1 L_end2")
    if o["prof"]: e("s_memrealtime s[20:21]")
    e("s_load_dwordx2 s[4:5], s[0:1], 40\ns_load_dwordx2 s[6:7], s[0:1], 56")
    e("s_lshl_b32 s3, s2, 13\nv_lshl_add_u32 v1, v0, 4, s3")
    e("s_mul_i32 s16, s2, 7282\ns_lshr_b32 s16, s16, 16\ns_mul_i32 s17, s16, 9\ns_sub_u32 s17, s2, s17")
    e("s_waitcnt lgkmcnt(0)")
    srd(e, 8, 6, None, 16 * 1179648); srd(e, 12, 4, None, 1179648)
    for p in range(16):
        e(f"s_mov_b32 s18, {p*1179648}\nbuffer_load_dwordx4 v[{16+4*p}:{19+4*p}], v1, s[8:11], s18 offen {o['k2ld']}".rstrip())
    e("v_lshrrev_b32 v2, 8, v0\nv_bfe_u32 v3, v0, 6, 1\nv_lshl_add_u32 v2, v2, 1, v3\nv_and_b32 v3, 15, v0\nv_lshl_add_u32 v2, v2, 4, v3")
    e("v_mul_u32_u24 v2, 1152, v2\nv_bfe_u32 v3, v0, 7, 1\nv_lshl_add_u32 v2, v3, 6, v2\nv_bfe_u32 v3, v0, 4, 1\nv_lshl_add_u32 v2, v3, 5, v2")
    e("v_bfe_u32 v3, v0, 5, 1\nv_lshl_add_u32 v2, v3, 4, v2\ns_mul_i32 s16, s16, 73728\ns_lshl_b32 s17, s17, 7\ns_add_u32 s16, s16, s17")
    for p in range(16):
        e(f"s_waitcnt vmcnt({15-p})")
        for j in range(4):
            x = 16 + 4 * p + j
            if p == 0: e(f"v_lshlrev_b32 v{4+2*j}, 16, v{x}\nv_and_b32 v{5+2*j}, 0xffff0000, v{x}")
            else: e(f"v_lshlrev_b32 v12, 16, v{x}\nv_and_b32 v13, 0xffff0000, v{x}\nv_pk_add_f32 v[{4+2*j}:{5+2*j}], v[{4+2*j}:{5+2*j}], v[12:13]")
    for j in range(4): e(f"v_cvt_pk_bf16_f32 v{12+j}, v{4+2*j}, v{5+2*j}")
    e("s_nop 1\nv_permlane16_swap_b32 v12, v14\nv_permlane16_swap_b32 v13, v15\ns_nop 1")
    e("buffer_store_dwordx4 v[12:15], v2, s[12:15], s16 offen")
    if o["prof"]:
        e("s_waitcnt vmcnt(0)\ns_memrealtime s[22:23]\ns_waitcnt lgkmcnt(0)\nv_mov_b32 v4, s20\nv_mov_b32 v5, s22\ns_mov_b32 s10, 268435456")
        e(f"s_lshl_b32 s16, s2, 8\ns_add_u32 s16, s16, {(32 << 20) + 48}\nv_mul_u32_u24 v1, {112*256}, v0\nv_cmp_gt_u32 vcc, 2, v0\ns_and_saveexec_b64 s[24:25], vcc\ns_cbranch_execz L_end2")
        e("buffer_store_dwordx2 v[4:5], v1, s[8:11], s16 offen")
    e("L_end2:\ns_endpgm")
    e(KD.format(n=K2, v=80))
    return "\n".join(L) + "\n"

if __name__ == "__main__":
    kw = {}
    out = sys.argv[1]
    for a in sys.argv[2:]:
        k, v = a.split("=")
        try: v = int(v)
        except ValueError: pass
        kw[k] = v
    open(out, "w").write(gen(**kw))
```
